```python
import torch

def _softmax(x, axis=-1):
    return torch.softmax(x, dim=axis)

def _gelu(x):
    return torch.nn.functional.gelu(x, approximate='tanh')

def _silu(x):
    return torch.nn.functional.silu(x)

def _sigmoid(x):
    return torch.sigmoid(x)

def _layernorm(x, axis=-1, eps=1e-05):
    m = x.mean(dim=axis, keepdim=True)
    v = x.var(dim=axis, keepdim=True, unbiased=False)
    return (x - m) / torch.sqrt(v + eps)

def _scatter_add(tgt, idx, src, axis=0):
    return tgt.clone().index_add_(axis, idx, src)

def _segment_sum(src, seg, n):
    out = torch.zeros((n,) + src.shape[1:], dtype=src.dtype)
    return out.index_add_(0, seg, src)

def _pad(x, pw):
    flat = tuple((v for pair in reversed(pw) for v in pair))
    return torch.nn.functional.pad(x, flat)
kernel_name = 'standalone__window_attn_davit__vision'

def setup_inputs():

    _w = lambda a: (lambda t: t.to(torch.bfloat16) if t.is_floating_point() else t)(torch.as_tensor(a))
    HW = 384
    C0 = 384
    ws = 7
    nh = 4
    H = W = max(HW // ws * ws, ws)
    C = max(C0 // nh * nh, nh)
    k = 3
    return {'x': _w((lambda *s: torch.randn(*s, dtype=torch.bfloat16) * 1.6)(1, H, W, C)), 'dw_pe': _w((lambda *s: torch.randn(*s, dtype=torch.bfloat16) * 1.6)(k, k, C) * 0.1), 'w_qkv': _w((lambda *s: torch.randn(*s, dtype=torch.bfloat16) * 1.6)(C, 3 * C) * C ** (-0.5)), 'w_o': _w((lambda *s: torch.randn(*s, dtype=torch.bfloat16) * 0.8)(C, C) * C ** (-0.5))}

def reference(x, dw_pe, w_qkv, w_o):
    B, H, W, C = x.shape
    ws = 7
    nh = 4
    dh = C // nh
    kk = dw_pe.shape[0]
    pad = kk // 2
    xp = _pad(x, ((0, 0), (pad, pad), (pad, pad), (0, 0)))
    pe = torch.zeros_like(x)
    for i in range(kk):
        for j in range(kk):
            pe = pe + xp[:, i:i + H, j:j + W, :] * dw_pe[i, j][None, None, None, :]
    x0 = x + pe
    h = _layernorm(x0, axis=-1)
    hw = h.reshape(B, H // ws, ws, W // ws, ws, C)
    hw = (lambda x, *d: x.permute(*d))(hw, 0, 1, 3, 2, 4, 5)
    hw = hw.reshape(-1, ws * ws, C)
    qkv = (hw @ w_qkv).reshape(-1, ws * ws, 3, nh, dh)
    q = qkv[:, :, 0].clone()
    k = qkv[:, :, 1].clone()
    v = qkv[:, :, 2].clone()
    scale = dh ** (-0.5)
    attn = torch.einsum('wnhd,wmhd->whnm', q, k) * scale
    attn = _softmax(attn, axis=-1)
    out = torch.einsum('whnm,wmhd->wnhd', attn, v)
    out = out.reshape(-1, ws * ws, C) @ w_o
    out = out.reshape(B, H // ws, W // ws, ws, ws, C)
    out = (lambda x, *d: x.permute(*d))(out, 0, 1, 3, 2, 4, 5)
    out = out.reshape(B, H, W, C)
    return x0 + out
```

```python
from gen_mb import *
def pre_load(nfr):
    s = "  v_lshlrev_b32 v1, 4, v0\n  s_lshl_b32 s3, s2, 16\n  v_add_u32 v1, s3, v1\n"
    for j in range(nfr):
        s += "  buffer_load_dwordx4 v[%d:%d], v1, s[12:15], 0 offen offset:0\n" % (8+4*j, 11+4*j)
        s += "  v_add_u32 v1, 0x1000, v1\n"
    s += "  s_waitcnt vmcnt(0)\n"
    return s
def zero_acc(n):
    return "".join("  v_accvgpr_write_b32 a%d, 0\n" % i for i in range(n))

ITER = 400
body = "  s_mov_b32 s30, %d\nL_loop:\n" % ITER
for m in range(5):
    for n in range(3):
        t = m*3+n
        body += "  v_mfma_f32_32x32x16_bf16 a[%d:%d], v[%d:%d], v[%d:%d], a[%d:%d]\n" % (16*t,16*t+15, 8+4*m, 11+4*m, 28+4*n, 31+4*n, 16*t, 16*t+15)
body += "  s_sub_u32 s30, s30, 1\n  s_cmp_lg_u32 s30, 0\n  s_cbranch_scc1 L_loop\n"
open("m32.s","w").write(kernel(body, pre=pre_load(8)+zero_acc(240), flops="256*4*%d*15*32768"%ITER, units="%d*15"%ITER))
body = "  s_mov_b32 s30, %d\nL_loop:\n" % ITER
for m in range(10):
    for n in range(6):
        t = m*6+n
        body += "  v_mfma_f32_16x16x32_bf16 a[%d:%d], v[%d:%d], v[%d:%d], a[%d:%d]\n" % (4*t,4*t+3, 8+4*m, 11+4*m, 48+4*n, 51+4*n, 4*t, 4*t+3)
body += "  s_sub_u32 s30, s30, 1\n  s_cmp_lg_u32 s30, 0\n  s_cbranch_scc1 L_loop\n"
open("m16.s","w").write(kernel(body, pre=pre_load(16)+zero_acc(240), flops="256*4*%d*60*16384"%ITER, units="%d*60"%ITER))
```

```python
from gen_mb import *
from gen1 import pre_load, zero_acc
def mk(name, pat, reps=None, ITER=None, lds=65536):
    nm = pat.count('M') + pat.count('B')
    tot = 12000 if 'M' in pat else 6000
    if reps is None: reps = max(1, 240 // nm)
    ITER = tot // (nm*reps)
    body = "  s_mov_b32 s30, %d\n  .p2align 6\nL_loop:\n" % ITER
    mi = 0; fi = 0
    for r in range(reps):
        for ch in pat:
            if ch == 'M':
                t = mi % 60; a = (mi // 10) % 6; b = mi % 10
                body += "  v_mfma_f32_16x16x32_bf16 v[%d:%d], a[%d:%d], a[%d:%d], v[%d:%d]\n" % (16+4*t, 19+4*t, 40+4*a, 43+4*a, 4*b, 4*b+3, 16+4*t, 19+4*t); mi += 1
            elif ch == 'B':
                t = mi % 15; a = (mi // 5) % 3; b = mi % 5
                body += "  v_mfma_f32_32x32x16_bf16 v[%d:%d], a[%d:%d], a[%d:%d], v[%d:%d]\n" % (16+16*t, 31+16*t, 40+4*a, 43+4*a, 4*b, 4*b+3, 16+16*t, 31+16*t); mi += 1
            elif ch == 'f':
                body += "  v_fmac_f32 v%d, v%d, v%d\n" % (8+fi%4, 12+fi%4, 12+(fi+1)%4); fi += 1
            elif ch == 'F':
                body += "  v_fma_f32 v%d, v%d, v%d, v%d\n" % (8+fi%4, 12+fi%4, 12+(fi+1)%4, 8+fi%4); fi += 1
            elif ch == 's':
                body += "  s_add_u32 s33, s33, 1\n"
            elif ch == 'w':
                body += "  s_waitcnt lgkmcnt(15)\n"
            elif ch == 'n':
                body += "  s_nop 0\n"
            elif ch == 'd':
                body += "  ds_read_b128 a[%d:%d], v3\n" % (64+4*(fi%8), 67+4*(fi%8)); fi += 1
            elif ch == 'g':
                body += "  buffer_load_dwordx4 a[%d:%d], v3, s[12:15], 0 offen\n" % (96+4*(fi%8), 99+4*(fi%8)); fi += 1
            elif ch == 'e':
                body += "  v_exp_f32 v%d, v%d\n" % (8+fi%4, 12+fi%4); fi += 1
            elif ch == 'c':
                body += "  v_cvt_pk_bf16_f32 v%d, v%d, v%d\n" % (8+fi%4, 12+fi%4, 12+(fi+1)%4); fi += 1
            elif ch == 'a':
                body += "  v_accvgpr_write_b32 a%d, v%d\n" % (128+fi%32, 12+fi%4); fi += 1
            elif ch == 'r':
                body += "  v_accvgpr_read_b32 v%d, a%d\n" % (8+fi%4, 128+fi%32); fi += 1
            elif ch == 'W':
                body += "  ds_write_b64 v3, v[8:9] offset:%d\n" % (4096*(fi%8)); fi += 1
            elif ch == 'X':
                body += "  ds_write_b128 v3, v[8:11] offset:%d\n" % (4096*(fi%8)); fi += 1
    body += "  s_sub_u32 s30, s30, 1\n  s_cmp_lg_u32 s30, 0\n  s_cbranch_scc1 L_loop\n  s_waitcnt vmcnt(0) lgkmcnt(0)\n"
    pre = "  v_lshlrev_b32 v1, 4, v0\n"
    for j in range(16):
        pre += "  buffer_load_dwordx4 a[%d:%d], v1, s[12:15], 0 offen offset:%d\n" % (4*j, 4*j+3, 0) + "  v_add_u32 v1, 0x1000, v1\n"
    pre += "  s_waitcnt vmcnt(0)\n  v_and_b32 v3, 63, v0\n  v_lshlrev_b32 v3, 4, v3\n"
    pre += "".join("  v_mov_b32 v%d, 0\n" % i for i in range(16,256))
    pre += "".join("  v_mov_b32 v%d, 1.0\n" % i for i in range(8,16))
    n = nm*reps
    open(name,"w").write(kernel(body, pre=pre, lds=lds, units="%d*%d"%(ITER,n)))
import sys
pats = ["M","Mf","Mff","Mfff","MF","MFF","MMffff","MMMffffff","MfffMf","MMff","MMfff","Ms","Mss","Msss","Mfs","Mffs","Mw","Mww","Mffw","Mn","Mnn","Mnnn",
        "Md","Mdf","Mdff","MMMMMMd","MMMMMMdw","MMMMMMdwg","MdMwMgMMM","Mg","Mgf","Me","Mef","MeMff","Mc","Mcc","Mcf","Ma","Maa","Mr","Mrr","MW","MWf","MX","MXf","MMMX",
        "B","Bffff","Bfffff","Bffffff","Bee","Beff","Befff","Bcccc","Bccccc","Bdfff","Bdffff","Bssss","Bsssss","Bssssss","BBffffffffff","Bffffs","Bfffffs","Bffffw","Bfffffw"]
for p in pats:
    mk("p_%s.s" % p, p)
```

```python
import sys

HEAD = """; @launch grid=(%(grid)d,1,1) block=(%(block)d,1,1) lds=%(lds)d
; FLOPS=%(flops)s UNITS=%(units)s
.amdgcn_target "amdgcn-amd-amdhsa--gfx950"
.text
.globl mb_kernel
.p2align 8
.type mb_kernel,@function
mb_kernel:
  s_load_dwordx2 s[4:5], s[0:1], 0
  s_load_dwordx2 s[6:7], s[0:1], 8
  s_load_dwordx2 s[8:9], s[0:1], 16
  s_waitcnt lgkmcnt(0)
  s_mov_b32 s12, s4
  s_mov_b32 s13, s5
  s_mov_b32 s14, 0x4000000
  s_mov_b32 s15, 0x20000
  s_mov_b32 s16, s6
  s_mov_b32 s17, s7
  s_mov_b32 s18, 0x4000000
  s_mov_b32 s19, 0x20000
  s_mov_b32 s20, s8
  s_mov_b32 s21, s9
  s_mov_b32 s22, 0x100000
  s_mov_b32 s23, 0x20000
"""
TAIL = """
  s_endpgm
.section .rodata,"a"
.p2align 6
.amdhsa_kernel mb_kernel
  .amdhsa_next_free_vgpr %(nv)d
  .amdhsa_next_free_sgpr 102
  .amdhsa_accum_offset %(acc)d
  .amdhsa_group_segment_fixed_size 0
  .amdhsa_kernarg_size 24
  .amdhsa_user_sgpr_count 2
  .amdhsa_user_sgpr_kernarg_segment_ptr 1
  .amdhsa_system_sgpr_workgroup_id_x 1
  .amdhsa_float_denorm_mode_32 3
.end_amdhsa_kernel
"""
STAMP0 = """
  s_barrier
  s_memtime s[40:41]
  s_memrealtime s[42:43]
  s_waitcnt lgkmcnt(0)
"""
STAMP1 = """
  s_memtime s[44:45]
  s_memrealtime s[46:47]
  s_waitcnt lgkmcnt(0)
  s_sub_u32 s44, s44, s40
  s_sub_u32 s46, s46, s42
  v_mov_b32 v2, s44
  v_mov_b32 v3, s46
  v_mov_b32 v4, 0
  v_mov_b32 v5, 0
  s_lshl_b32 s48, s2, 4
  v_mov_b32 v6, s48
  v_cmp_eq_u32 vcc, 0, v0
  s_and_saveexec_b64 s[50:51], vcc
  s_cbranch_execz L_nost
  buffer_store_dwordx4 v[2:5], v6, s[20:23], 0 offen
  s_waitcnt vmcnt(0)
L_nost:
  s_mov_b64 exec, s[50:51]
"""
def kernel(body, grid=256, block=256, lds=0, nv=512, acc=256, flops="0", units="1", pre=""):
    d = dict(grid=grid, block=block, lds=lds, nv=nv, acc=acc, flops=flops, units=units)
    return HEAD % d + pre + STAMP0 + body + STAMP1 + TAIL % d
```

```python
from gen8 import *
import gen8
EXTRA = {
 'o': lambda fi: "  v_dot2c_f32_bf16 v%d, v%d, v%d\n" % (8+fi%4, 12+fi%4, 12+(fi+1)%4),
 'O': lambda fi: "  v_dot2_f32_bf16 v%d, v%d, v%d, v%d\n" % (8+fi%4, 12+fi%4, 12+(fi+1)%4, 8+fi%4),
 'p': lambda fi: "  v_perm_b32 v%d, v%d, v%d, s34\n" % (8+fi%4, 12+fi%4, 12+(fi+1)%4),
 'l': lambda fi: "  v_lshlrev_b32 v%d, 16, v%d\n" % (8+fi%4, 12+fi%4),
 'x': lambda fi: "  v_max3_f32 v%d, v%d, v%d, v%d\n" % (8+fi%4, 12+fi%4, 12+(fi+1)%4, 8+fi%4),
 'm': lambda fi: "  v_mul_f32 v%d, v%d, v%d\n" % (8+fi%4, 12+fi%4, 12+(fi+1)%4),
 'k': lambda fi: "  v_cndmask_b32 v%d, v%d, v%d, vcc\n" % (8+fi%4, 12+fi%4, 12+(fi+1)%4),
 'q': lambda fi: "  v_permlane32_swap_b32 v%d, v%d\n" % (8+(fi%2)*2, 9+(fi%2)*2),
 'u': lambda fi: "  v_permlane16_swap_b32 v%d, v%d\n" % (8+(fi%2)*2, 9+(fi%2)*2),
 'D': lambda fi: "  v_add_f32_dpp v%d, v%d, v%d row_shr:4 row_mask:0xf bank_mask:0xf\n" % (8+fi%4, 12+fi%4, 12+(fi+1)%4),
 'P': lambda fi: "  v_pk_mul_f32 v[%d:%d], v[12:13], v[14:15]\n" % (8+2*(fi%2), 9+2*(fi%2)),
 'A': lambda fi: "  v_pk_add_f32 v[%d:%d], v[12:13], v[14:15]\n" % (8+2*(fi%2), 9+2*(fi%2)),
 'R': lambda fi: "  v_rcp_f32 v%d, v%d\n" % (8+fi%4, 12+fi%4),
 'S': lambda fi: "  buffer_store_dwordx4 v[8:11], v3, s[16:19], 0 offen\n",
 'b': lambda fi: "  ds_read_b64 a[%d:%d], v3\n" % (64+4*(fi%8), 65+4*(fi%8)),
 'y': lambda fi: "  ds_write_b64 v7, v[8:9] offset:%d\n" % (4096*(fi%8)),
 'z': lambda fi: "  v_mfma_f32_4x4x4_16b_bf16_1k v[%d:%d], a[0:1], a[2:3], v[%d:%d]\n" % (8, 11, 8, 11),
}
def mk2(name, pat):
    import gen8 as G
    nm = pat.count('M') + pat.count('B')
    tot = 12000 if 'M' in pat else 6000
    reps = max(1, 240 // nm)
    ITER = tot // (nm*reps)
    body = "  s_mov_b32 s34, 0x07060302\n  s_mov_b32 s30, %d\n  .p2align 6\nL_loop:\n" % ITER
    mi = 0; fi = 0
    for r in range(reps):
        for ch in pat:
            if ch == 'M':
                t = mi % 60; a = (mi // 10) % 6; b = mi % 10
                body += "  v_mfma_f32_16x16x32_bf16 v[%d:%d], a[%d:%d], a[%d:%d], v[%d:%d]\n" % (16+4*t, 19+4*t, 40+4*a, 43+4*a, 4*b, 4*b+3, 16+4*t, 19+4*t); mi += 1
            elif ch == 'B':
                t = mi % 15; a = (mi // 5) % 3; b = mi % 5
                body += "  v_mfma_f32_32x32x16_bf16 v[%d:%d], a[%d:%d], a[%d:%d], v[%d:%d]\n" % (16+16*t, 31+16*t, 40+4*a, 43+4*a, 4*b, 4*b+3, 16+16*t, 31+16*t); mi += 1
            elif ch in EXTRA:
                body += EXTRA[ch](fi); fi += 1
            elif ch == 'f':
                body += "  v_fmac_f32 v%d, v%d, v%d\n" % (8+fi%4, 12+fi%4, 12+(fi+1)%4); fi += 1
            elif ch == 's':
                body += "  s_add_u32 s33, s33, 1\n"
            elif ch == 'w':
                body += "  s_waitcnt lgkmcnt(15)\n"
            elif ch == 'd':
                body += "  ds_read_b128 a[%d:%d], v3\n" % (64+4*(fi%8), 67+4*(fi%8)); fi += 1
            elif ch == 'g':
                body += "  buffer_load_dwordx4 a[%d:%d], v3, s[12:15], 0 offen\n" % (96+4*(fi%8), 99+4*(fi%8)); fi += 1
            elif ch == 'c':
                body += "  v_cvt_pk_bf16_f32 v%d, v%d, v%d\n" % (8+fi%4, 12+fi%4, 12+(fi+1)%4); fi += 1
            elif ch == 'e':
                body += "  v_exp_f32 v%d, v%d\n" % (8+fi%4, 12+fi%4); fi += 1
    body += "  s_sub_u32 s30, s30, 1\n  s_cmp_lg_u32 s30, 0\n  s_cbranch_scc1 L_loop\n  s_waitcnt vmcnt(0) lgkmcnt(0)\n"
    pre = "  v_lshlrev_b32 v1, 4, v0\n"
    for j in range(16):
        pre += "  buffer_load_dwordx4 a[%d:%d], v1, s[12:15], 0 offen offset:%d\n" % (4*j, 4*j+3, 0) + "  v_add_u32 v1, 0x1000, v1\n"
    pre += "  s_waitcnt vmcnt(0)\n  v_and_b32 v3, 63, v0\n  v_lshlrev_b32 v7, 3, v3\n  v_lshlrev_b32 v3, 4, v3\n"
    pre += "".join("  v_mov_b32 v%d, 0\n" % i for i in range(16,256))
    pre += "".join("  v_mov_b32 v%d, 1.0\n" % i for i in range(8,16))
    n = nm*reps
    open(name,"w").write(kernel(body, pre=pre, lds=65536, units="%d*%d"%(ITER,n)))
pats = ["Mo","Moo","MO","MOO","Mp","Mpp","Ml","Mll","Mx","Mxx","Mm","Mmm","Mk","Mkk","Mq","Mqq","Mu","MD","MDD","MP","MA","MR","MMMMS","MMMMMMMMS","Mb","Mbb","My","MMy","Myf",
        "Msff","Mwff","Msdf","Mswf","Mssf","Msfsf","Mdd","Mdg","MMMMg","MMMMgg","MMg","Msoo","Bo","Boooo","Boooooo","BOOOOOO","Bpppppp","BP","BPP","MsM","Msef","Mse","Mfe","Mcs","Mscc","Mof","Mop"]
import os
os.system("rm -f p_*.s q_*.s")
for p in pats:
    mk2("q_%s.s" % p, p)
```
